```python
import torch

def _softmax(x, axis=-1):
    return torch.softmax(x, dim=axis)
def _gelu(x):
    return torch.nn.functional.gelu(x, approximate="tanh")
def _silu(x):
    return torch.nn.functional.silu(x)
def _sigmoid(x):
    return torch.sigmoid(x)
def _layernorm(x, axis=-1, eps=1e-5):
    m = x.mean(dim=axis, keepdim=True)
    v = x.var(dim=axis, keepdim=True, unbiased=False)
    return (x - m) / torch.sqrt(v + eps)
def _scatter_add(tgt, idx, src, axis=0):
    return tgt.clone().index_add_(axis, idx, src)
def _segment_sum(src, seg, n):
    out = torch.zeros((n,) + src.shape[1:], dtype=src.dtype)
    return out.index_add_(0, seg, src)
def _pad(x, pw):
    flat = tuple(v for pair in reversed(pw) for v in pair)
    return torch.nn.functional.pad(x, flat)

kernel_name = 'concat_heads__mha_block_cached__gqa_block_cached__near_ridge'

def setup_inputs():

    _w = (lambda a: (lambda t: t.to(torch.bfloat16) if t.is_floating_point() else t)(torch.as_tensor(a)))
    def _A_setup():
        B, Sq, D = 32, 48, 512
        H, Sk, Dh = 32, 48, 128
        return {
            "x": _w((lambda *s: torch.randn(*s, dtype=torch.bfloat16) * 0.8)(B, Sq, D)),
            "k_cache": _w((lambda *s: torch.randn(*s, dtype=torch.bfloat16) * 0.8)(B, H, Sk, Dh)),
            "v_cache": _w((lambda *s: torch.randn(*s, dtype=torch.bfloat16) * 0.05)(B, H, Sk, Dh)),
            "wq": _w((lambda *s: torch.randn(*s, dtype=torch.bfloat16) * 0.8)(D, H * Dh) * (D ** -0.5)),
            "wo": _w((lambda *s: torch.randn(*s, dtype=torch.bfloat16) * 0.05)(H * Dh, D) * ((H * Dh) ** -0.5)),
        }
    _A_in = _A_setup()

    def _B_setup():
        B, Sq, D = 32, 48, 512
        Hq, Hkv, Sk, Dh = 32, 32, 48, 128
        assert Hq % Hkv == 0, (Hq, Hkv)
        return {
            "x": _w((lambda *s: torch.randn(*s, dtype=torch.bfloat16) * 0.8)(B, Sq, D)),
            "k_cache": _w((lambda *s: torch.randn(*s, dtype=torch.bfloat16) * 0.8)(B, Hkv, Sk, Dh)),
            "v_cache": _w((lambda *s: torch.randn(*s, dtype=torch.bfloat16) * 0.05)(B, Hkv, Sk, Dh)),
            "wq": _w((lambda *s: torch.randn(*s, dtype=torch.bfloat16) * 0.8)(D, Hq * Dh) * (D ** -0.5)),
            "wo": _w((lambda *s: torch.randn(*s, dtype=torch.bfloat16) * 0.05)(Hq * Dh, D) * ((Hq * Dh) ** -0.5)),
        }
    _B_in = _B_setup()

    return {
        "A_x": _A_in["x"],
        "A_k_cache": _A_in["k_cache"],
        "A_v_cache": _A_in["v_cache"],
        "A_wq": _A_in["wq"],
        "A_wo": _A_in["wo"],
        "B_x": _B_in["x"],
        "B_k_cache": _B_in["k_cache"],
        "B_v_cache": _B_in["v_cache"],
        "B_wq": _B_in["wq"],
        "B_wo": _B_in["wo"],
    }

def reference(A_x, A_k_cache, A_v_cache, A_wq, A_wo, B_x, B_k_cache, B_v_cache, B_wq, B_wo):
    def _A_ref(x, k_cache, v_cache, wq, wo):
        B, Sq, D = x.shape
        H, Dh = 32, 128
        q = (lambda x, *d: x.permute(*d))((x @ wq).reshape(B, Sq, H, Dh), 0, 2, 1, 3)
        scores = torch.einsum("bhqd,bhkd->bhqk", q, k_cache) * (Dh ** -0.5)
        p = _softmax(scores, axis=-1)
        o = torch.einsum("bhqk,bhkd->bhqd", p, v_cache)
        return (lambda x, *d: x.permute(*d))(o, 0, 2, 1, 3).reshape(B, Sq, H * Dh) @ wo

    def _B_ref(x, k_cache, v_cache, wq, wo):
        B, Sq, D = x.shape
        Hq, Dh = 32, 128
        Hkv = k_cache.shape[1]
        rep = Hq // Hkv
        q = (lambda x, *d: x.permute(*d))((x @ wq).reshape(B, Sq, Hq, Dh), 0, 2, 1, 3)
        k = (lambda x, n, axis: torch.repeat_interleave(x, n, dim=axis))(k_cache, rep, axis=1)
        v = (lambda x, n, axis: torch.repeat_interleave(x, n, dim=axis))(v_cache, rep, axis=1)
        scores = torch.einsum("bhqd,bhkd->bhqk", q, k) * (Dh ** -0.5)
        p = _softmax(scores, axis=-1)
        o = torch.einsum("bhqk,bhkd->bhqd", p, v)
        return (lambda x, *d: x.permute(*d))(o, 0, 2, 1, 3).reshape(B, Sq, Hq * Dh) @ wo

    a = _A_ref(A_x, A_k_cache, A_v_cache, A_wq, A_wo)
    b = _B_ref(B_x, B_k_cache, B_v_cache, B_wq, B_wo)
    return torch.concatenate([a, b], axis=-1)
```

```python
import re

class I:
    __slots__ = ("text", "kind", "w", "r", "rc", "need", "tag", "cost", "lat", "idx")
    def __init__(s, text, kind, w=(), r=(), rc=(), need=(), tag=None):
        s.text, s.kind = text, kind
        s.w, s.r, s.rc = list(w), list(r), list(rc)
        s.need, s.tag = list(need), tag

def R(p, a, n=1):
    return [f"{p}{i}" for i in range(a, a + n)]
def rn(p, a, n=1):
    return f"{p}{a}" if n == 1 else f"{p}[{a}:{a+n-1}]"

def valu(op, d, *src, trans=False, extra=""):
    regs = [x.lstrip("-") for x in src if re.fullmatch(r"-?[vas]\d+", x)]
    return I(f"{op} {d}, " + ", ".join(src) + extra, "trans" if trans else "valu", [d], regs)
def accrd(d, a):
    return I(f"v_accvgpr_read_b32 v{d}, a{a}", "valu", [f"v{d}"], [f"a{a}"])
def cvt(d, lo, hi):
    return valu("v_cvt_pk_bf16_f32", f"v{d}", f"v{lo}", f"v{hi}")
def perm(d, hi, lo, sel):
    return valu("v_perm_b32", f"v{d}", f"v{hi}", f"v{lo}", sel)
def swap(op, a, b):
    return I(f"{op} v{a}, v{b}", "perml", [f"v{a}", f"v{b}"], [f"v{a}", f"v{b}"])
def mfma(d, a, b, zero=False, k16=False):
    n = 2 if k16 else 4
    op = "v_mfma_f32_16x16x16_bf16" if k16 else "v_mfma_f32_16x16x32_bf16"
    c = "0" if zero else rn(d[0], d[1], 4)
    return I(f"{op} {rn(d[0],d[1],4)}, {rn(a[0],a[1],n)}, {rn(b[0],b[1],n)}, {c}", "mfma",
             R(d[0], d[1], 4), R(a[0], a[1], n) + R(b[0], b[1], n), [] if zero else R(d[0], d[1], 4))
def dsrd(d, addr, off, need=()):
    return I(f"ds_read_b128 {rn(d[0],d[1],4)}, v{addr} offset:{off}", "ds", R(d[0], d[1], 4), [f"v{addr}"], need=need)
def dswr(addr, s, off):
    return I(f"ds_write_b128 v{addr}, {rn('v',s,4)} offset:{off}", "ds", [], [f"v{addr}"] + R("v", s, 4))
def bload(d, n, voff, srd, soff, imm=0, flags=""):
    op = {1: "buffer_load_dword", 2: "buffer_load_dwordx2", 4: "buffer_load_dwordx4"}[n]
    o = f" offset:{imm}" if imm else ""
    sr = [soff] if soff.startswith("s") else []
    return I(f"{op} {rn('v',d,n)}, v{voff}, s[{srd}:{srd+3}], {soff} offen{o}{flags}", "vmem",
             R("v", d, n), [f"v{voff}"] + R("s", srd, 4) + sr)
def bdma(voff, srd, soff, imm, tag, flags=""):
    o = f" offset:{imm}" if imm else ""
    sr = [soff] if soff.startswith("s") else []
    return I(f"buffer_load_dwordx4 v{voff}, s[{srd}:{srd+3}], {soff} offen{o}{flags} lds", "vmem",
             [], [f"v{voff}", "m0"] + R("s", srd, 4) + sr, tag=tag)
def bstore(s, voff, srd, soff, imm=0, flags=""):
    o = f" offset:{imm}" if imm else ""
    sr = [soff] if soff.startswith("s") else []
    return I(f"buffer_store_dwordx4 {rn('v',s,4)}, v{voff}, s[{srd}:{srd+3}], {soff} offen{o}{flags}", "vstore",
             [], R("v", s, 4) + [f"v{voff}"] + R("s", srd, 4) + sr)
def salu(text, w=(), r=()):
    return I(text, "salu", w, r)
def setm0(val):
    if isinstance(val, tuple):
        return I(f"s_add_u32 m0, {val[0]}, {val[1]}", "salu", ["m0", "scc"], [val[0]])
    return I(f"s_mov_b32 m0, {val}", "salu", ["m0"], [])
def barrier(need=(), lds=False):
    return I("s_barrier", "barrier", need=list(need) + (["LDS"] if lds else []))

COST = {"valu": 4, "trans": 8, "perml": 4, "mfma": 8, "ds": 4, "vmem": 4, "vstore": 4, "salu": 4, "barrier": 4, "raw": 4}
LAT = {"valu": 4, "trans": 12, "perml": 8, "mfma": 40, "ds": 128, "vmem": 8, "vstore": 4, "salu": 4, "barrier": 4, "raw": 4}

def schedule(ins, window=400):
    n = len(ins)
    preds = [dict() for _ in range(n)]
    lastw, readers = {}, {}
    lastcls = {}
    for i, x in enumerate(ins):
        for g in x.r + x.rc:
            if g in lastw:
                p = lastw[g]
                l = LAT[ins[p].kind]
                if ins[p].kind == "mfma" and x.kind == "mfma" and g in x.rc:
                    l = 16 if ins[p].text.split()[0] == x.text.split()[0] else 40
                elif ins[p].kind in ("valu", "trans") and x.kind in ("mfma", "perml"): l += 8
                preds[i][p] = max(preds[i].get(p, 0), l)
        for g in x.w:
            if g in lastw and g not in x.rc:
                p = lastw[g]
                preds[i][p] = max(preds[i].get(p, 0), LAT[ins[p].kind] if ins[p].kind == "mfma" else 4)
            for p in readers.get(g, []):
                if p != i:
                    preds[i][p] = max(preds[i].get(p, 0), 16 if (ins[p].kind == "mfma" and g in ins[p].rc) else (12 if ins[p].kind == "vstore" else 1))
        cls = {"ds": "ds", "vmem": "vm", "vstore": "vm"}.get(x.kind)
        if x.kind == "barrier":
            for c in ("ds", "vm", "bar"):
                if c in lastcls: preds[i].setdefault(lastcls[c], 1)
            lastcls["bar"] = i
        elif cls:
            if cls in lastcls: preds[i].setdefault(lastcls[cls], 1)
            if "bar" in lastcls: preds[i].setdefault(lastcls["bar"], 1)
            lastcls[cls] = i
        for g in x.r + x.rc: readers.setdefault(g, []).append(i)
        for g in x.w:
            lastw[g] = i; readers[g] = []
    succs = [[] for _ in range(n)]
    for i in range(n):
        for p, l in preds[i].items(): succs[p].append((i, l))
    prio = [0] * n
    for i in range(n - 1, -1, -1):
        prio[i] = COST[ins[i].kind] + max([l + prio[j] for j, l in succs[i]], default=0)
    npred = [len(p) for p in preds]
    ready_t = [0] * n
    ready = [i for i in range(n) if npred[i] == 0]
    out, t, mf_free = [], 0, 0
    done = [False] * n
    lo = 0
    while len(out) < n:
        while lo < n and done[lo]: lo += 1
        cand = [i for i in ready if i < lo + window]
        def start(i):
            return max(ready_t[i], mf_free if ins[i].kind == "mfma" else 0, t)
        now = [i for i in cand if start(i) <= t]
        if now:
            mf = [i for i in now if ins[i].kind == "mfma"]
            mem = [i for i in now if ins[i].kind in ("ds", "vmem", "vstore")]
            pool = mf or mem or now
            i = max(pool, key=lambda k: (prio[k], -k))
        else:
            i = min(cand, key=lambda k: (start(k), -prio[k]))
        t = start(i)
        if ins[i].kind == "mfma": mf_free = t + 16
        out.append(ins[i]); done[i] = True; ready.remove(i)
        for j, l in succs[i]:
            ready_t[j] = max(ready_t[j], t + l)
            npred[j] -= 1
            if npred[j] == 0: ready.append(j)
        t += COST[ins[i].kind]
    return out, t

def interleave(mf, fill, lead=0):
    out, k = [], 0
    n = len(mf)
    for i, m in enumerate(mf):
        out.append(m)
        tgt = min(len(fill), ((i + 1) * len(fill) + n - 1 - lead) // max(1, n - lead))
        while k < tgt:
            out.append(fill[k]); k += 1
    return out + fill[k:]

def finalize(ins):
    vq, lq, res = [], [], []
    for x in ins:
        touch = set(x.w) | set(x.r) | set(x.rc)
        nv = nl = None
        isload = x.kind == "vmem"
        for k, y in enumerate(vq):
            hit = (y.tag in x.need) or "VM" in x.need
            if y.kind == "vmem" and set(y.w) & (set(x.r) | set(x.rc) | (set() if isload else set(x.w))): hit = True
            if hit: nv = len(vq) - 1 - k
        for k, y in enumerate(lq):
            hit = "LDS" in x.need or (set(y.w) & touch)
            if not y.w and (set(y.r) & set(x.w)) and x.kind in ("vmem",): hit = True
            if hit: nl = len(lq) - 1 - k
        if nv is not None or nl is not None:
            t = "s_waitcnt"
            if nv is not None:
                assert nv <= 63
                t += f" vmcnt({nv})"; vq = vq[len(vq) - nv:] if nv else []
            if nl is not None:
                nl = min(nl, 15)
                t += f" lgkmcnt({nl})"; lq = lq[len(lq) - nl:] if nl else []
            res.append(I(t, "wait"))
        res.append(x)
        if x.kind in ("vmem", "vstore"):
            vq.append(x); assert len(vq) <= 63, "vmcnt overflow"
        if x.kind == "ds": lq.append(x)
    out = []
    for x in res:
        need, dist = 0, 0
        rd, rdc, wr = set(x.r), set(x.rc), set(x.w)
        for y in reversed(out):
            if dist >= 8: break
            yw, req = set(y.w), 0
            v = x.kind in ("valu", "trans", "perml")
            if y.kind in ("valu", "trans", "perml"):
                if x.kind == "mfma" and yw & (rd | rdc): req = 2
                if x.kind == "perml" and yw & rd: req = 2
                if y.kind == "trans" and x.kind in ("valu", "perml") and yw & rd: req = max(req, 1)
                if "readfirstlane" in x.text and yw & rd: req = 1
                sw = {g for g in yw if g[0] == "s"}
                if sw & rd: req = 5 if x.kind in ("vmem", "vstore") else (2 if v else 4)
            if y.kind == "mfma":
                if x.kind == "mfma":
                    if yw & rd: req = 8
                    elif yw & rdc: req = 0 if (yw == rdc and y.text.split()[0] == x.text.split()[0]) else 6
                    elif yw & wr: req = 6
                elif yw & (rd | wr): req = 8
                if v and set(y.rc) & wr: req = max(req, 3)
            if y.kind == "vstore" and set(y.r) & wr and x.kind != "salu": req = 2
            if y.kind == "salu" and "m0" in yw and "m0" in rd and x.kind == "vmem": req = 1
            need = max(need, req - dist)
            dist += int(y.text.split()[1]) + 1 if y.text.startswith("s_nop") else 1
        if need > 0: out.append(I(f"s_nop {need-1}", "nop"))
        out.append(x)
    return out
```

```python
import sys, math, struct
from asmlib import *
NAME = "concat_heads__mha_block_cached__gqa_block_cached__near_ridge"
OPT = dict(kvflag=" nt", stflag="", pf=1, kvsched="a", stamp=0, k2flag="")
for a in sys.argv[2:]:
    k, v = a.split("="); OPT[k] = int(v) if v.lstrip("-").isdigit() else v.replace("_", " ")

sX, sWq, sWo, sK, sV, sP = 8, 12, 16, 20, 24, 28
S8K = lambda i: "0" if i == 0 else f"s{35+i}"
S4K, SB1, SELLO, SELHI, SC = "s43", 44, "s50", "s51", "s52"
vWq, vWo, vX, vK0, vK1, vV, vP, vXA, vO0, vO1, vOW, vT = 1, 2, 3, 4, 5, 6, 7, 8, 12, 13, 14, 15
TB, WB, VB = 16, 32, 160
FB = 192
acc = lambda j, qt: ("a", (qt * 8 + j) * 4)
stage = lambda s: WB + 32 * (s & 3)
fbuf = lambda s, qt: ("a", FB + 24 * (s & 1) + 4 * qt)

def raw(t, w=(), r=()): return I(t, "salu", w, r)

def stamp(k):
    if not OPT["stamp"]: return []
    return [raw(f"s_memtime s[{60+2*k}:{61+2*k}]")]

def prologue():
    p = []
    a = lambda t: p.append(raw(t))
    a("s_cmp_ge_u32 s2, 256"); a("s_cbranch_scc1 L_k1_end")
    p += stamp(0)
    a("s_and_b32 s3, s2, 7"); a("s_lshr_b32 s4, s2, 3")
    a("s_lshr_b32 s5, s3, 2")
    a("s_mul_i32 s6, s5, 40")
    a("s_add_u32 s6, s0, s6"); a("s_addc_u32 s7, s1, 0")
    a("s_load_dwordx2 s[8:9], s[6:7], 0"); a("s_load_dwordx2 s[20:21], s[6:7], 8")
    a("s_load_dwordx2 s[24:25], s[6:7], 16"); a("s_load_dwordx2 s[12:13], s[6:7], 24")
    a("s_load_dwordx2 s[16:17], s[6:7], 32"); a("s_load_dwordx2 s[28:29], s[0:1], 96")
    p.append(valu("v_lshrrev_b32", "v15", "6", "v0"))
    p.append(valu("v_and_b32", "v0", "63", "v0"))
    p.append(I("v_readfirstlane_b32 s53, v15", "valu", ["s53"], ["v15"]))
    a("s_and_b32 s3, s3, 3"); a("s_lshl_b32 s3, s3, 1"); a("s_and_b32 s57, s4, 1")
    a("s_or_b32 s3, s3, s57")
    a("s_lshr_b32 s4, s4, 1")
    for i in range(1, 8): a(f"s_mov_b32 s{35+i}, {i*8192}")
    a("s_mov_b32 s43, 4096")
    for i in range(3): a(f"s_mov_b32 s{SB1+i}, {393216+4096*i}")
    a("s_mov_b32 s48, 65536"); a("s_mov_b32 s49, 81920")
    a("s_mov_b32 s50, 0x05040100"); a("s_mov_b32 s51, 0x07060302")
    c = struct.unpack("<I", struct.pack("<f", math.log2(math.e) / math.sqrt(128.0)))[0]
    a(f"s_mov_b32 s52, {hex(c)}")
    p.append(raw("s_lshl_b32 s54, s53, 10", ["s54"], ["s53"]))
    a("s_mul_i32 s56, s53, 12288"); a("s_add_u32 s55, s56, 98304")
    a("s_lshl_b32 s58, s53, 8")
    V = lambda op, d, *s: p.append(valu(op, f"v{d}", *s))
    V("v_and_b32", 16, "15", "v0")
    V("v_lshrrev_b32", 17, "4", "v0")
    V("v_lshlrev_b32", 18, "4", "v16")
    V("v_lshl_add_u32", vWq, "v17", "18", "v18")
    V("v_lshl_add_u32", vWo, "v17", "15", "v18")
    V("v_lshl_add_u32", vV, "v17", "10", "v18")
    V("v_lshl_add_u32", vP, "v17", "12", "v18")
    V("v_xor_b32", 19, "v16", "v17")
    V("v_lshlrev_b32", 19, "4", "v19")
    V("v_lshl_add_u32", vK0, "v17", "8", "v19")
    V("v_xor_b32", vK1, "0x80", f"v{vK0}")
    a("s_lshr_b32 s57, s53, 1"); a("s_lshl_b32 s57, s57, 7"); a("s_lshl_b32 s59, s53, 12")
    V("v_xor_b32", 19, "s57", "v19")
    V("v_lshl_add_u32", 19, "v17", "10", "v19")
    V("v_add_u32", vX, "s59", "v19")
    V("v_lshlrev_b32", 19, "2", "v17")
    V("v_and_b32", 20, "11", "v16")
    V("v_xor_b32", 19, "v19", "v20")
    V("v_lshlrev_b32", 19, "4", "v19")
    V("v_lshl_add_u32", vXA, "v16", "8", "v19")
    for t in range(1, 4): V("v_xor_b32", vXA + t, str(16 * t), f"v{vXA}")
    V("v_lshlrev_b32", 19, "4", "v0")
    V("v_add_u32", vO0, "0xc000", "v19")
    V("v_add_u32", vO1, "0x18000", "v19")
    V("v_add_u32", vOW, "s56", f"v{vO0}")
    a("s_lshl_b32 s57, s4, 2"); a("s_add_u32 s57, s57, s53"); a("s_lshl_b32 s57, s57, 3")
    V("v_lshrrev_b32", 19, "3", "v0"); V("v_add_u32", 19, "s57", "v19")
    V("v_and_b32", 20, "7", "v0"); V("v_lshlrev_b32", 20, "7", "v20"); V("v_subrev_u32", 20, "s58", "v20")
    V("v_lshl_add_u32", vT, "v19", "13", "v20")
    V("v_lshl_add_u32", 0, "v19", "10", "v20")
    a("s_waitcnt lgkmcnt(0)")
    def srd(b, offreg, size):
        a(f"s_add_u32 s{b}, s{b}, {offreg}"); a(f"s_addc_u32 s{b+1}, s{b+1}, 0")
        a(f"s_and_b32 s{b+1}, s{b+1}, 0xffff")
        a(size); a(f"s_mov_b32 s{b+3}, 0x20000")
    a("s_mul_i32 s57, s4, 98304"); srd(sX, "s57", f"s_mov_b32 s{sX+2}, 98304")
    a("s_lshl_b32 s57, s3, 10"); a("s_add_u32 s57, s57, s58"); srd(sWq, "s57", f"s_sub_u32 s{sWq+2}, 0x400000, s57")
    a("s_lshl_b32 s57, s3, 19"); a("s_add_u32 s57, s57, s58"); srd(sWo, "s57", f"s_sub_u32 s{sWo+2}, 0x80000, s58")
    a("s_lshl_b32 s57, s4, 6"); a("s_lshl_b32 s59, s3, 2"); a("s_add_u32 s57, s57, s59"); a("s_add_u32 s57, s57, s53")
    a("s_mul_i32 s57, s57, 12288")
    srd(sK, "s57", f"s_mov_b32 s{sK+2}, {393216+12288}"); srd(sV, "s57", f"s_mov_b32 s{sV+2}, {393216+12288}")
    a("s_lshl_b32 s57, s5, 4"); a("s_add_u32 s57, s57, s4"); a("s_lshl_b32 s57, s57, 3"); a("s_add_u32 s57, s57, s3")
    a("s_mul_i32 s57, s57, 98304"); a("s_add_u32 s57, s57, s58"); srd(sP, "s57", f"s_sub_u32 s{sP+2}, 98304, s58")
    return p

def xdma(u):
    o = []
    for qt in range(6):
        o += [setm0(("s54", (u * 6 + qt) * 4096)), salu(f"s_mov_b32 s47, {qt*16384+u*256}", ["s47"]),
              bdma(vX, sX, "s47", 0, "X0" if u == 0 else "X1")]
    return o
def kdma(b):
    o = []
    for n in range(12):
        g = []
        if n % 4 == 0: g.append(setm0(("s55" if b == 0 else "s56", (n // 4) * 4096)))
        so = ["0", S4K, S8K(1)][n // 4] if b == 0 else f"s{SB1+n//4}"
        g.append(bdma(vK1 if (n & 2) else vK0, sK, so, (n & 3) * 1024, f"K{b}", OPT["kvflag"]))
        o.append(g)
    return o
def vload(b):
    o = []
    for kt in range(3):
        so = ["0", S4K, S8K(1)][kt] if b == 0 else f"s{SB1+kt}"
        for r in range(4):
            o.append([bload(VB + 48 * b + (kt * 4 + r) * 4, 4, vV, sV, so, r * 256, OPT["kvflag"])])
    return o
def wload(ph, s):
    st = stage(s)
    if ph == 0:
        o = [bload(st + 4 * i, 4, vWq, sWq, S8K(i)) for i in range(8)]
        adv = (8 if (s & 3) != 3 else 104) * 8192
        v = vWq
    else:
        o = [bload(st + 4 * i, 4, vWo, sWo, "0" if i < 4 else S4K, (i & 3) * 1024) for i in range(8)]
        adv = (8 if (s & 3) != 3 else 104) * 1024
        v = vWo
    if s < 15: o.append(valu("v_add_u32", f"v{v}", hex(adv), f"v{v}"))
    return o
def perms(s, p, tb=None):
    st = stage(s); tb = TB + 8 * (p & 1) if tb is None else tb
    return [perm(tb + 4 * jj + m, st + (2 * m + 1) * 4 + p, st + 2 * m * 4 + p, SELHI if jj else SELLO)
            for jj in range(2) for m in range(4)]
def fragrd(ph, s):
    u, t = s >> 2, s & 3
    if ph == 0:
        return [dsrd(fbuf(s, qt), vXA + t, ((u & 1) * 6 + qt) * 4096) for qt in range(6)]
    return [dsrd(fbuf(s, qt), vO0 if qt < 3 else vO1, u * 12288 + (t * 3 + qt % 3) * 1024) for qt in range(6)]
def segm(ph, s, p, tb=None):
    tb = TB + 8 * (p & 1) if tb is None else tb
    o = []
    for jj in range(2):
        for qt in range(6):
            w, f = ("v", tb + 4 * jj), fbuf(s, qt)
            o.append(mfma(acc(2 * p + jj, qt), w if ph == 0 else f, f if ph == 0 else w, zero=(s == 0)))
    return o

def gemm(ph, extra, pre):
    o = []
    for s in range(15):
        o += pre.get(s, [])
        fr = fragrd(ph, s + 1)
        if ph == 0 and s == 7:
            fr = [valu("v_add_u32", f"v{vXA+t}", "0xc000", f"v{vXA+t}") for t in range(4)] + fr
        wl_prev = wload(ph, s + 3)[4:] if 1 <= s <= 12 else []
        wl_this = wload(ph, s + 4)[:4] if s <= 11 else []
        ex = extra.get(s, [])
        h = (len(ex) + 1) // 2
        nf = len(fr) - 4
        fills = [perms(s, 1) + wl_prev + fr[:nf],
                 perms(s, 2) + fr[nf:nf + 2] + sum(ex[:h], []),
                 perms(s, 3) + fr[nf + 2:] + sum(ex[h:], []),
                 wl_this + perms(s + 1, 0)]
        for p in range(4):
            o += interleave(segm(ph, s, p), fills[p], lead=1)
    return o

def attention():
    o = []
    QF, TMP, SS, PP, MS, OA, OP = 80, 96, 104, 128, 140, 144, 16
    for p in range(4):
        if p: o += perms(15, p, 160 - 64 if False else None)
        o += segm(0, 15, p)
    n = 0
    for b in range(2):
        VT = 32 if b == 0 else VB
        if b == 0:
            o += [salu("s_add_u32 s57, s56, 0xc000", ["s57", "scc"], ["s56"])]
            o += [valu("v_add_u32", f"v{vXA+t}", "s57", f"v{vXA+t}") for t in range(4)]
        else:
            o += [valu("v_subrev_u32", f"v{vXA+t}", "0x18000", f"v{vXA+t}") for t in range(4)]
            o += wload(1, 0)
        for t in range(4):
            for kt in range(3):
                o.append(dsrd(("a", FB + (kt * 4 + t) * 4), vXA + t, kt * 4096, need=[f"K{b}"]))
        vp = []
        for j in range(8):
            for m in range(6):
                src = VB + 48 * b
                dst = VT + j * 4 + m if m < 4 else VT + 32 + j * 2 + (m - 4)
                vp.append(perm(dst, src + (2 * m + 1) * 4 + (j >> 1), src + 2 * m * 4 + (j >> 1), SELHI if j & 1 else SELLO))
        for qt in range(3):
            S, P = SS + 12 * (n & 1), PP + 6 * (n & 1)
            m0, m1 = MS + 2 * (n & 1), MS + 2 * (n & 1) + 1
            k = 0
            for t in range(4):
                for d in range(4):
                    t0 = TMP + 2 * (k & 3); k += 1
                    o.append(accrd(t0, acc(2 * d, b * 3 + qt)[1] + t))
                    o.append(accrd(t0 + 1, acc(2 * d + 1, b * 3 + qt)[1] + t))
                    o.append(cvt(QF + 4 * t + d, t0, t0 + 1))
                for kt in range(3):
                    o.append(mfma(("v", S + 4 * kt), ("a", FB + (kt * 4 + t) * 4), ("v", QF + 4 * t), zero=(t == 0)))
            if qt == 0: o += vp
            v = lambda i: f"v{i}"
            o.append(valu("v_max3_f32", v(m0), v(S), v(S + 1), v(S + 2)))
            o.append(valu("v_max3_f32", v(m1), v(S + 3), v(S + 4), v(S + 5)))
            o.append(valu("v_max3_f32", v(m0), v(m0), v(S + 6), v(S + 7)))
            o.append(valu("v_max3_f32", v(m1), v(m1), v(S + 8), v(S + 9)))
            o.append(valu("v_max3_f32", v(m0), v(m0), v(S + 10), v(S + 11)))
            o.append(valu("v_max_f32", v(m0), v(m0), v(m1)))
            for op in ("v_permlane16_swap_b32", "v_permlane32_swap_b32"):
                o.append(valu("v_mov_b32", v(m1), v(m0)))
                o.append(swap(op, m0, m1))
                o.append(valu("v_max_f32", v(m0), v(m0), v(m1)))
            o.append(valu("v_mul_f32", v(m0), SC, v(m0)))
            for i in range(12):
                o.append(valu("v_fma_f32", v(S + i), v(S + i), SC, f"-v{m0}"))
                o.append(valu("v_exp_f32", v(S + i), v(S + i), trans=True))
            o.append(valu("v_add_f32", v(m0), v(S), v(S + 1)))
            o.append(valu("v_add_f32", v(m1), v(S + 2), v(S + 3)))
            for i in range(4, 12):
                r = m0 if i & 1 else m1
                o.append(valu("v_add_f32", v(r), v(r), v(S + i)))
            o.append(valu("v_add_f32", v(m0), v(m0), v(m1)))
            for op in ("v_permlane16_swap_b32", "v_permlane32_swap_b32"):
                o.append(valu("v_mov_b32", v(m1), v(m0)))
                o.append(swap(op, m0, m1))
                o.append(valu("v_add_f32", v(m0), v(m0), v(m1)))
            o.append(valu("v_rcp_f32", v(m0), v(m0), trans=True))
            for i in range(12): o.append(valu("v_mul_f32", v(S + i), v(S + i), v(m0)))
            Pa, Pb = PP + 4 * (n & 1), PP + 8 + 2 * (n & 1)
            for i in range(4): o.append(cvt(Pa + i, S + 2 * i, S + 2 * i + 1))
            for i in range(2): o.append(cvt(Pb + i, S + 8 + 2 * i, S + 9 + 2 * i))
            for d in range(4):
                A = OA + 8 * (d & 1)
                for jj in range(2):
                    o.append(mfma(("v", A + 4 * jj), ("v", VT + (2 * d + jj) * 4), ("v", Pa), zero=True))
                for jj in range(2):
                    o.append(mfma(("v", A + 4 * jj), ("v", VT + 32 + (2 * d + jj) * 2), ("v", Pb), k16=True))
                for r in range(4): o.append(cvt(OP + 4 * r + d, A + r, A + 4 + r))
            for r in range(4): o.append(dswr(vOW, OP + 4 * r, b * 49152 + (r * 3 + qt) * 1024))
            n += 1
    o += wload(1, 1) + wload(1, 2) + wload(1, 3)[:4]
    return o

def epilogue():
    o = []
    TT, TMP, PK = 160, 192, 208
    for p in range(1, 4): o += perms(15, p, TT + 8 * p)
    so = ["0", "s37", "s39", "s41", "s48", "s49"]
    k = 0
    for qt in range(6):
        for j in range(8):
            tb = TB + 4 * j if j < 2 else TT + 4 * j
            o.append(mfma(acc(j, qt), fbuf(15, qt), ("v", tb)))
        for r in range(4):
            pk = PK + 4 * ((qt * 4 + r) % 8)
            for d in range(4):
                t0 = TMP + 2 * (k & 7); k += 1
                o.append(accrd(t0, acc(2 * d, qt)[1] + r)); o.append(accrd(t0 + 1, acc(2 * d + 1, qt)[1] + r))
                o.append(cvt(pk + d, t0, t0 + 1))
            o.append(bstore(pk, vP, sP, so[qt], r * 1024, OPT["stflag"]))
    return o

def k1():
    o = prologue()
    o += xdma(0) + wload(0, 0) + wload(0, 1)
    if OPT["pf"]: o.append(bload(VB, 1, vT, sWq, "0"))
    o += xdma(1) + xdma(2) + xdma(3) + wload(0, 2) + wload(0, 3)
    o += [barrier(need=["X0"])] + stamp(1) + fragrd(0, 0) + perms(0, 0)
    k0, k1_, v0, v1 = kdma(0), kdma(1), vload(0), vload(1)
    ex = {}
    if OPT["kvsched"] == "a":
        seq = k0 + v0 + v1[:8]
        for s in range(8): ex[s] = seq[4 * s:4 * s + 4]
        seq = k1_ + v1[8:]
        for s in range(8, 12): ex[s] = seq[4 * (s - 8):4 * (s - 8) + 4]
    elif OPT["kvsched"] == "b":
        seq = k0 + v0
        for s in range(12): ex[s] = seq[2 * s:2 * s + 2]
        seq = k1_ + v1
        for s in range(12, 15): ex[s] = seq[8 * (s - 12):8 * (s - 12) + 8]
    if OPT["pf"]: ex[13] = ex.get(13, []) + [[bload(vT, 1, 0, sWo, "0")]]
    pre = {2: [barrier(need=["X1"])], 8: [barrier(lds=True)]}
    o += gemm(0, ex, pre)
    o += [barrier(lds=True)] + stamp(2)
    at, t = schedule(attention())
    print("attention est cycles", t, file=sys.stderr)
    o += at
    o += [barrier(lds=True)] + stamp(3) + fragrd(1, 0) + perms(0, 0)
    o += gemm(1, {}, {})
    o += stamp(4)
    ep, t = schedule(epilogue())
    print("epilogue est cycles", t, file=sys.stderr)
    o += ep
    if OPT["stamp"]:
        o += stamp(5)
        o.append(I("s_waitcnt vmcnt(0)", "salu", need=["VM"]))
        o += stamp(6)
        o += [raw(t) for t in ["s_load_dwordx2 s[4:5], s[0:1], 88", "s_waitcnt lgkmcnt(0)", f"s_cmp_lg_u32 s2, {OPT['stamp']-1}",
              "s_cbranch_scc1 L_k1_end", "s_cmp_lg_u32 s53, 0", "s_cbranch_scc1 L_k1_end", "s_and_b32 s5, s5, 0xffff",
              "s_mov_b32 s6, 256", "s_mov_b32 s7, 0x20000", "v_mov_b32 v1, 0"]]
        for k in range(1, 7):
            o += [raw(t) for t in [f"s_sub_u32 s57, s{60+2*k}, s60", "v_mov_b32 v2, s57", f"buffer_store_dword v2, v1, s[4:7], 0 offen offset:{4*k}", "s_nop 1"]]
    return finalize(o)

def k2():
    t = ["s_cmp_ge_u32 s2, 768", "s_cbranch_scc1 L_k2_end",
         "s_load_dwordx2 s[4:5], s[0:1], 96", "s_load_dwordx2 s[8:9], s[0:1], 80",
         "s_mul_i32 s3, s2, 2731", "s_lshr_b32 s3, s3, 16",
         "s_mul_i32 s12, s3, 24", "s_sub_u32 s12, s2, s12", "s_lshl_b32 s12, s12, 8",
         "v_add_u32 v0, s12, v0", "v_lshlrev_b32 v1, 4, v0",
         "v_lshrrev_b32 v2, 6, v0", "v_and_b32 v3, 63, v0", "v_lshlrev_b32 v3, 4, v3", "v_lshl_add_u32 v2, v2, 11, v3",
         "s_mul_i32 s13, s3, 786432", "s_and_b32 s14, s3, 15", "s_mul_i32 s14, s14, 196608",
         "s_lshr_b32 s15, s3, 4", "s_lshl_b32 s15, s15, 10", "s_add_u32 s14, s14, s15"]
    t += [f"s_mov_b32 s{16+h}, {98304*h}" for h in range(8)]
    t += ["s_mov_b32 s24, 0xffff0000", "s_waitcnt lgkmcnt(0)",
          "s_add_u32 s4, s4, s13", "s_addc_u32 s5, s5, 0", "s_and_b32 s5, s5, 0xffff", "s_mov_b32 s6, 786432", "s_mov_b32 s7, 0x20000",
          "s_add_u32 s8, s8, s14", "s_addc_u32 s9, s9, 0", "s_and_b32 s9, s9, 0xffff", "s_sub_u32 s10, 0x300000, s14", "s_mov_b32 s11, 0x20000"]
    o = [raw(x) for x in t]
    o += [bload(4 + 4 * h, 4, 1, 4, f"s{16+h}", 0, OPT["k2flag"]) for h in range(8)]
    for h in range(8):
        for d in range(4):
            s = f"v{4+4*h+d}"
            if h == 0:
                o += [valu("v_lshlrev_b32", f"v{36+2*d}", "16", s), valu("v_and_b32", f"v{37+2*d}", "s24", s)]
            else:
                o += [valu("v_lshlrev_b32", "v44", "16", s), valu("v_and_b32", "v45", "s24", s),
                      valu("v_add_f32", f"v{36+2*d}", f"v{36+2*d}", "v44"), valu("v_add_f32", f"v{37+2*d}", f"v{37+2*d}", "v45")]
    o += [cvt(4 + d, 36 + 2 * d, 37 + 2 * d) for d in range(4)]
    o.append(bstore(4, 2, 8, "0"))
    return finalize(o)

def kern(name, body, end):
    return (f".globl {name}\n.p2align 8\n.type {name},@function\n{name}:\n" +
            "".join(f"    {x.text}\n" for x in body) + f"{end}:\n    s_endpgm\n")
def desc(name, nv, ao, ns):
    return (f".p2align 6\n.amdhsa_kernel {name}\n  .amdhsa_next_free_vgpr {nv}\n  .amdhsa_next_free_sgpr {ns}\n"
            f"  .amdhsa_accum_offset {ao}\n  .amdhsa_group_segment_fixed_size 0\n  .amdhsa_kernarg_size 104\n"
            "  .amdhsa_user_sgpr_count 2\n  .amdhsa_user_sgpr_kernarg_segment_ptr 1\n"
            "  .amdhsa_system_sgpr_workgroup_id_x 1\n.end_amdhsa_kernel\n")

assert all((w * 2731) >> 16 == w // 24 for w in range(768))
hdr = "".join(l for l in open(f"cdna_kernels/{NAME}.s.ref").readlines()[:14])
txt = hdr + f"; @launch kernel={NAME}_kernel grid=(256,1,1) block=(256,1,1) lds=163840\n"
txt += "; @launch kernel=head_reduce_kernel grid=(768,1,1) block=(256,1,1) lds=0\n"
txt += '.amdgcn_target "amdgcn-amd-amdhsa--gfx950"\n.text\n'
txt += kern(NAME + "_kernel", k1(), "L_k1_end") + kern("head_reduce_kernel", k2(), "L_k2_end")
txt += '.section .rodata,"a"\n' + desc(NAME + "_kernel", 512, 256, 102) + desc("head_reduce_kernel", 48, 48, 32)
open(sys.argv[1], "w").write(txt)
```
